```python
import torch

def _softmax(x, axis=-1):
    return torch.softmax(x, dim=axis)
def _gelu(x):
    return torch.nn.functional.gelu(x, approximate="tanh")
def _silu(x):
    return torch.nn.functional.silu(x)
def _sigmoid(x):
    return torch.sigmoid(x)
def _layernorm(x, axis=-1, eps=1e-5):
    m = x.mean(dim=axis, keepdim=True)
    v = x.var(dim=axis, keepdim=True, unbiased=False)
    return (x - m) / torch.sqrt(v + eps)
def _scatter_add(tgt, idx, src, axis=0):
    return tgt.clone().index_add_(axis, idx, src)
def _segment_sum(src, seg, n):
    out = torch.zeros((n,) + src.shape[1:], dtype=src.dtype)
    return out.index_add_(0, seg, src)
def _pad(x, pw):
    flat = tuple(v for pair in reversed(pw) for v in pair)
    return torch.nn.functional.pad(x, flat)

kernel_name = 'interleave_layers__ssm_conv_h3__dense_activation_mish__prompt'

def setup_inputs():

    _w = (lambda a: (lambda t: t.to(torch.bfloat16) if t.is_floating_point() else t)(torch.as_tensor(a)))
    def _A_setup():
        B, S, D = 1, 2048, 640
        ks = 4
        return {
            "q": _w((lambda *s: torch.randn(*s, dtype=torch.bfloat16) * 0.05)(B, S, D)),
            "k": _w((lambda *s: torch.randn(*s, dtype=torch.bfloat16) * 0.2)(B, S, D)),
            "v": _w((lambda *s: torch.randn(*s, dtype=torch.bfloat16) * 0.2)(B, S, D)),
            "shift_k": _w((lambda *s: torch.randn(*s, dtype=torch.bfloat16) * 0.2)(D, ks) * 0.5),
            "ssm_k": _w((lambda *s: torch.randn(*s, dtype=torch.bfloat16) * 0.4)(D, S) * (1.0 / S ** 0.5)),
            "ssm_D": _w((lambda *s: torch.randn(*s, dtype=torch.bfloat16) * 0.2)(D)),
        }
    _A_in = _A_setup()

    def _B_setup():
        B, S, D, F = 1, 2048, 640, 1728
        return {
            "x": _w((lambda *s: torch.randn(*s, dtype=torch.bfloat16) * 0.05)(B, S, D)),
            "w1": _w((lambda *s: torch.randn(*s, dtype=torch.bfloat16) * 0.8)(D, F) * (D ** -0.5)),
            "b1": _w((lambda *s: torch.randn(*s, dtype=torch.bfloat16) * 0.2)(F)),
            "w2": _w((lambda *s: torch.randn(*s, dtype=torch.bfloat16) * 0.1)(F, D) * (F ** -0.5)),
        }
    _B_in = _B_setup()

    return {
        "A_q": _A_in["q"],
        "A_k": _A_in["k"],
        "A_v": _A_in["v"],
        "A_shift_k": _A_in["shift_k"],
        "A_ssm_k": _A_in["ssm_k"],
        "A_ssm_D": _A_in["ssm_D"],
        "B_x": _B_in["x"],
        "B_w1": _B_in["w1"],
        "B_b1": _B_in["b1"],
        "B_w2": _B_in["w2"],
    }

def reference(A_q, A_k, A_v, A_shift_k, A_ssm_k, A_ssm_D, B_x, B_w1, B_b1, B_w2):
    def _A_ref(q, k, v, shift_k, ssm_k, ssm_D):
        B, S, D = q.shape
        ks = shift_k.shape[-1]
        k_pad = _pad(k, ((0, 0), (ks - 1, 0), (0, 0)))
        k_shift = torch.zeros_like(k)
        for t in range(ks):
            k_shift = k_shift + k_pad[:, t:t + S, :] * shift_k[:, ks - 1 - t][None, None, :]
        kv = k_shift * v
        L = 2 * S
        kv_pad = _pad(kv, ((0, 0), (0, S), (0, 0)))
        kf_pad = _pad(ssm_k, ((0, 0), (0, S)))
        kv_f = (lambda x, axes=(-2,-1): torch.fft.rfft2(x.float(), dim=axes))(kv_pad[:, None, :, :], axes=(1, 2))
        kf_f = (lambda x, axes=(-2,-1): torch.fft.rfft2(x.float(), dim=axes))(kf_pad[:, None, :], axes=(1, 2))
        kf_f = (lambda x, *d: x.permute(*d))(kf_f, 1, 2, 0)
        y_f = kv_f * kf_f[None, :, :, :]
        y = (lambda x, s, axes=(-2,-1): torch.fft.irfft2(x, s=s, dim=axes).to(torch.bfloat16))(y_f, (1, L), axes=(1, 2))[:, 0, :S, :]
        y = y + kv * ssm_D[None, None, :]
        return q * y

    def _B_ref(x, w1, b1, w2):
        h = torch.einsum("bsd,df->bsf", x, w1) + b1
        sp = torch.log1p(torch.exp(-torch.abs(h))) + torch.where(h > 0, h, torch.zeros_like(h))
        act = h * torch.tanh(sp)
        return torch.einsum("bsf,fd->bsd", act, w2)

    x = A_q
    x = x + _A_ref(_layernorm(x, axis=-1), A_k, A_v, A_shift_k, A_ssm_k, A_ssm_D)
    x = x + _B_ref(_layernorm(x, axis=-1), B_w1, B_b1, B_w2)
    x = x + _A_ref(_layernorm(x, axis=-1), A_k, A_v, A_shift_k, A_ssm_k, A_ssm_D)
    x = x + _B_ref(_layernorm(x, axis=-1), B_w1, B_b1, B_w2)
    return x
```

```python
KNAME = 'interleave_layers__ssm_conv_h3__dense_activation_mish__prompt_kernel'
class Asm:
    def __init__(self):
        self.lines = []
    def __call__(self, s=''):
        for l in s.split('\n'):
            self.lines.append(l)
    def label(self, n): self.lines.append(n + ':')
    def text(self): return '\n'.join(self.lines) + '\n'

def header(grid, block, lds, kname=KNAME):
    return f"""; @launch grid=({grid},1,1) block=({block},1,1) lds={lds}
.amdgcn_target "amdgcn-amd-amdhsa--gfx950"
.text
.globl {kname}
.p2align 8
.type {kname},@function
{kname}:
"""
def footer(vgpr=256, agpr=0, sgpr=102, kname=KNAME):
    acc = (vgpr + 3) // 4 * 4
    nfv = acc + agpr if agpr else vgpr
    return f"""
.section .rodata,"a"
.p2align 6
.amdhsa_kernel {kname}
  .amdhsa_next_free_vgpr {nfv}
  .amdhsa_next_free_sgpr {sgpr}
  .amdhsa_accum_offset {acc}
  .amdhsa_group_segment_fixed_size 0
  .amdhsa_kernarg_size 104
  .amdhsa_user_sgpr_count 2
  .amdhsa_user_sgpr_kernarg_segment_ptr 1
  .amdhsa_system_sgpr_workgroup_id_x 1
.end_amdhsa_kernel
"""
def srd(a, dst, src, nbytes):
    a(f"s_mov_b32 s{dst}, s{src}")
    a(f"s_and_b32 s{dst+1}, s{src+1}, 0xffff")
    a(f"s_mov_b32 s{dst+2}, {hex(nbytes)}")
    a(f"s_mov_b32 s{dst+3}, 0x20000")
```

```python
import re
TRANS = ('v_exp_f32','v_log_f32','v_rcp_f32','v_rsq_f32','v_sqrt_f32','v_sin_f32','v_cos_f32')
def parse_regs(tok):
    tok = tok.strip()
    tok = re.sub(r'^(-|abs\()', '', tok).rstrip(')')
    m = re.fullmatch(r'([vas])(\d+)', tok)
    if m: return {(m.group(1), int(m.group(2)))}
    m = re.fullmatch(r'([vas])\[(\d+):(\d+)\]', tok)
    if m: return {(m.group(1), i) for i in range(int(m.group(2)), int(m.group(3))+1)}
    if tok in ('vcc','vcc_lo','vcc_hi'): return {('x','vcc')}
    if tok in ('exec','exec_lo','exec_hi'): return {('x','exec')}
    if tok == 'm0': return {('x','m0')}
    return set()
class I:
    pass
def decode(line):
    s = line.split(';')[0].strip()
    if not s or s.endswith(':') or s.startswith('.'): return None
    parts = s.split(None, 1)
    op = parts[0]
    rest = parts[1] if len(parts) > 1 else ''
    ops = [t.strip() for t in re.split(r',(?![^\[]*\])', rest)] if rest else []
    toks = []
    for t in ops:
        toks.append(t.split()[0] if t else t)
    ins = I(); ins.op = re.sub(r'_(e32|e64|dpp|sdwa)$', '', op); ins.raw = s
    ins.mfma = op.startswith('v_mfma')
    ins.valu = op.startswith('v_') and not ins.mfma
    ins.trans = ins.op in TRANS
    ins.dot = op.startswith('v_dot')
    ins.vmem = op.startswith('buffer_') or op.startswith('global_')
    ins.ds = op.startswith('ds_')
    ins.salu = op.startswith('s_')
    ins.perml = op.startswith('v_permlane')
    ins.dpp = '_dpp' in op or 'row_' in rest or 'wave_' in rest or 'quad_perm' in rest
    ins.rdlane = ins.op in ('v_readfirstlane_b32','v_readlane_b32')
    ins.lds_dma = ins.vmem and re.search(r'\blds\b', rest) is not None
    R = [parse_regs(t) for t in toks]
    w, r = set(), set()
    ins.srcC = set(); ins.srcAB = set(); ins.stdata = set()
    if ins.mfma:
        w = R[0]; ins.srcAB = R[1] | R[2]; ins.srcC = R[3]; r = ins.srcAB | ins.srcC
    elif ins.valu:
        w = set(R[0]);
        start = 1
        if re.match(r'v_(add|sub|subrev|addc|subb|subbrev)_co', op): w |= R[1]; start = 2
        for x in R[start:]: r |= x
        if ins.perml and 'swap' in op: w |= R[1]; r |= R[0]
        if ins.op in ('v_fmac_f32','v_dot2c_f32_bf16','v_writelane_b32') or ins.dpp: r |= R[0]
        if ins.op == 'v_cndmask_b32' and len(R) == 3: r |= {('x','vcc')}
    elif ins.vmem:
        if 'load' in op and not ins.lds_dma:
            w = R[0]
            for x in R[1:]: r |= x
            if 'd16' in op: r |= R[0]
        else:
            for x in R: r |= x
            if 'store' in op and ('x3' in op or 'x4' in op): ins.stdata = R[0] if op.startswith('buffer_') else R[1]
            if ins.lds_dma: r |= {('x','m0')}
    elif ins.ds:
        if op.startswith('ds_read') or 'permute' in op or 'swizzle' in op:
            w = R[0]
            for x in R[1:]: r |= x
        else:
            for x in R: r |= x
    elif ins.salu:
        if op.startswith(('s_cmp','s_cbranch','s_branch','s_waitcnt','s_nop','s_barrier','s_endpgm','s_sleep','s_setprio','s_bitcmp')):
            for x in R: r |= x
        else:
            if R: w = R[0]
            for x in R[1:]: r |= x
            if 'saveexec' in op: w |= {('x','exec')}
    ins.w, ins.r = w, r
    ins.ws = 1
    if op == 's_nop': ins.ws = int(toks[0], 0) + 1
    return ins
def vg(s): return {x for x in s if x[0] in 'va'}
def sg(s): return {x for x in s if x[0] == 's' or x == ('x','vcc')}
def need(p, c):
    n = 0
    if p.valu:
        pw = vg(p.w)
        if c.mfma and pw & c.r: n = max(n, 2)
        if (c.perml or c.dpp) and pw & c.r: n = max(n, 2)
        if c.rdlane and pw & c.r: n = max(n, 1)
        if p.trans and c.valu and not c.trans and pw & c.r: n = max(n, 1)
        if p.dot and (c.valu or c.mfma) and pw & (c.r | c.w):
            if c.op == p.op and not (pw & (c.r - parse_last(c))): pass
            else: n = max(n, 3)
        ps = sg(p.w)
        if ps:
            if c.vmem and ps & c.r: n = max(n, 5)
            if c.valu and ps & c.r: n = max(n, 4 if c.op in ('v_readlane_b32','v_writelane_b32') else 2)
            if c.salu and ps & c.r: n = max(n, 1)
    if p.mfma:
        if (c.valu or c.vmem or c.ds) and p.w & (c.r | c.w): n = max(n, 8)
        if c.mfma:
            if p.w & c.srcAB: n = max(n, 8)
            if p.w & c.srcC and p.w != c.srcC: n = max(n, 6)
        if c.valu and p.srcC & c.w: n = max(n, 3)
    if p.stdata:
        if c.valu and p.stdata & c.w: n = max(n, 2)
        elif p.stdata & c.w: n = max(n, 1)
    if p.salu and ('x','m0') in p.w and c.lds_dma: n = max(n, 1)
    return n
def parse_last(c):
    toks = [t.strip().split()[0] for t in re.split(r',(?![^\[]*\])', c.raw.split(None,1)[1])]
    return parse_regs(toks[-1]) if c.op == 'v_dot2_f32_bf16' else parse_regs(toks[0])
def fix(lines, verbose=False):
    out = []; hist = []
    added = 0
    for line in lines:
        ins = decode(line)
        if ins is None:
            out.append(line); continue
        req = 0; dist = 0
        for p in reversed(hist):
            n = need(p, ins) - dist
            if n > req: req = n
            dist += p.ws
            if dist >= 12: break
        if req > 0:
            out.append(f"s_nop {req-1}  ; hz")
            nop = decode(f"s_nop {req-1}"); hist.append(nop); added += req
            if verbose: print('nop', req, 'before', ins.raw)
        out.append(line); hist.append(ins)
        if len(hist) > 16: hist = hist[-16:]
    return out, added
```

```python
import sys
from asmlib import Asm, KNAME
import hz

LOG2E = 1.4426950408889634
LN2 = 0.6931471805599453
import struct
def f32(x): return '0x%08x' % struct.unpack('<I', struct.pack('<f', x))[0]

KVT = 0x000000
YB  = 0x280000
NF  = 0x500000
ACT = 0x780000
W1P = 0xE80000
W2P = 0x10B0000
EX  = 0x12E0000
FL  = 0x13E0000
PF1 = FL + 32768
PF2 = FL + 32768 + 1024
STAMP = 0x1400000
WS_BYTES = 256 << 20
OOB = 0x40000000
HC = 0; HCS = 4256; HCH = 8 * HCS
G0 = 3 * HCH; GCH = 47 * 144
T0 = 122880
CTL = 133120
SC = 143360
LDS_BYTES = 163840
S_WS, S_OUT, S_B1, S_Q, S_K, S_V, S_SK, S_HK, S_W1, S_W2, S_DBG, S_CODE = 32, 36, 40, 44, 48, 52, 56, 60, 64, 68, 72, 76
def srd(n): return f"s[{n}:{n+3}]"
J8, CC, WV, MH, GG, MQ, JD, LAYER, SLOW, DEAD = 's3','s4','s5','s6','s7','s8','s9','s10','s11','s12'
SNF = 14
CH0 = 's24'
CH2 = 's25'
FLB = 's26'
SPIN_LIMIT = 40000
VX = 212; VY = 192; VW2 = 232
VS3, VS8 = 12, 13
VSTAMP = 15

class Gen:
    def __init__(self, stop=None, stamps=False):
        self.a = Asm(); self.stop = stop; self.stamps = stamps; self.nl = 0; self.nstamp = 0
    def __call__(self, s): self.a(s)
    def lab(self, p='L'):
        self.nl += 1; return f"{p}_{self.nl}"
    def stamp(self, idx):
        if not self.stamps: return
        self(f"s_waitcnt lgkmcnt(0)\ns_memtime s[98:99]\ns_waitcnt lgkmcnt(0)\nv_writelane_b32 v{VSTAMP}, s98, {idx}")
    def w2reg(self, fr):
        return f"a[{4*fr}:{4*fr+3}]" if fr < 64 else f"v[{VW2+4*(fr-64)}:{VW2+4*(fr-64)+3}]"
    def poll(self, loads, check, cnt='s97'):
        L = self.lab('poll'); D = self.lab('pdone'); T = self.lab('ptime')
        self(f"s_mov_b32 {cnt}, 0\n{L}:\n{loads}\ns_add_u32 {cnt}, {cnt}, 1\ns_cmp_gt_u32 {cnt}, {SPIN_LIMIT}\ns_cbranch_scc1 {T}\ns_cmp_lg_u32 {DEAD}, 0\ns_cbranch_scc1 {T}\ns_waitcnt vmcnt(0)\n{check}\ns_cbranch_vccnz {L}\ns_branch {D}\n{T}:\ns_mov_b32 {DEAD}, 1\ns_waitcnt vmcnt(0)\n{D}:")
    def acquire(self):
        L = self.lab('acq')
        self(f"s_cmp_eq_u32 {SLOW}, 0\ns_cbranch_scc1 {L}\nbuffer_inv sc1\ns_waitcnt vmcnt(0)\n{L}:")
    def publish(self, vval, vzero, soff):
        F = self.lab('pubf'); D = self.lab('pubd')
        self(f"""s_waitcnt vmcnt(0)
s_mov_b64 exec, 1
s_cmp_eq_u32 {SLOW}, 0
s_cbranch_scc1 {F}
buffer_wbl2 sc1
s_waitcnt vmcnt(0)
buffer_store_dword {vval}, {vzero}, {srd(S_WS)}, {soff} offen sc1
s_branch {D}
{F}:
buffer_store_dword {vval}, {vzero}, {srd(S_WS)}, {soff} offen
{D}:
s_mov_b64 exec, -1""")

    def prologue(self):
        g = self
        g(f"""s_cmp_ge_u32 s2, 256
s_cbranch_scc1 L_end
s_load_dwordx2 s[{S_K}:{S_K+1}], s[0:1], 8
s_load_dwordx2 s[{S_V}:{S_V+1}], s[0:1], 16
s_load_dwordx2 s[{S_SK}:{S_SK+1}], s[0:1], 24
s_load_dwordx2 s[{S_HK}:{S_HK+1}], s[0:1], 32
s_load_dwordx2 s[{S_WS}:{S_WS+1}], s[0:1], 96
s_load_dwordx2 s[{S_W1}:{S_W1+1}], s[0:1], 56
s_load_dwordx2 s[{S_W2}:{S_W2+1}], s[0:1], 72
s_load_dwordx2 s[{S_DBG}:{S_DBG+1}], s[0:1], 88
s_load_dwordx2 s[{S_Q}:{S_Q+1}], s[0:1], 0
s_load_dwordx2 s[{S_B1}:{S_B1+1}], s[0:1], 64
s_load_dwordx2 s[{S_OUT}:{S_OUT+1}], s[0:1], 80
s_load_dwordx2 s[30:31], s[0:1], 40
v_lshrrev_b32 v3, 6, v0
v_and_b32 v1, 63, v0
v_lshlrev_b32 v2, 4, v1
v_readfirstlane_b32 {WV}, v3
s_and_b32 {J8}, s2, 7
s_lshr_b32 {CC}, s2, 3
s_lshr_b32 {MH}, {CC}, 4
s_and_b32 {GG}, {CC}, 15
s_lshr_b32 {MQ}, {CC}, 3
s_and_b32 {JD}, {CC}, 7
s_mov_b32 {LAYER}, 1
s_mov_b32 {SLOW}, 0
s_mov_b32 {DEAD}, 0
s_mul_i32 s80, {J8}, 80
s_lshr_b32 s81, {CC}, 1
s_mul_i32 s81, s81, 5
s_add_u32 s80, s80, s81
s_add_u32 {CH2}, s80, 4
s_and_b32 s81, {CC}, 1
s_lshl_b32 s81, s81, 1
s_add_u32 {CH0}, s80, s81
s_lshl_b32 {FLB}, {J8}, 12
s_add_u32 {FLB}, {FLB}, {hex(FL)}""")
        for s, nb in ((S_K, 2621440), (S_V, 2621440), (S_SK, 5120), (S_HK, 2621440), (S_WS, WS_BYTES), (S_W1, 2211840), (S_W2, 2211840),
                      (S_DBG, 256), (S_Q, 2621440), (S_B1, 3456), (S_OUT, 2621440)):
            g(f"s_mov_b32 s{s+2}, {hex(nb)}\ns_mov_b32 s{s+3}, 0x20000")
        if self.stamps:
            g(f"v_mov_b32 v{VSTAMP}, 0\ns_memrealtime s[96:97]\ns_waitcnt lgkmcnt(0)\nv_writelane_b32 v{VSTAMP}, s96, 63")
            self.stamp(0)
        g(f"""s_lshl_b32 s80, {J8}, 2
s_add_u32 s80, s80, {MQ}
s_lshl_b32 s80, s80, 2
s_add_u32 s80, s80, {WV}
s_lshl_b32 s27, s80, 4
v_and_b32 v4, 15, v1
v_lshrrev_b32 v5, 4, v1
v_add_u32 v6, s27, v4
v_mul_u32_u24 v6, 1280, v6
v_mul_u32_u24 v7, 40, v5
s_mul_i32 s80, {JD}, 160
v_add3_u32 v14, v6, v7, s80
s_cmp_eq_u32 {WV}, 3
s_cbranch_scc1 L_w3""")

    def qloads(self):
        self(f"""buffer_load_dwordx4 v[{VY}:{VY+3}], v14, {srd(S_Q)}, 0 offen
buffer_load_dwordx4 v[{VY+4}:{VY+7}], v14, {srd(S_Q)}, 0 offen offset:16
buffer_load_dwordx2 v[{VY+8}:{VY+9}], v14, {srd(S_Q)}, 0 offen offset:32""")

    def p0_waves012(self):
        g = self
        K0, V0, SK0, H0 = 16, 44, 60, 76
        g(f"""v_mul_u32_u24 v3, 6554, v1
v_lshrrev_b32 v3, 16, v3
v_mul_u32_u24 v4, 10, v3
v_sub_u32 v4, v1, v4                 ; cc = lane%10
s_mul_i32 s80, {WV}, 6
v_add_u32 v5, s80, v3                ; rg
s_lshl_b32 s81, {CC}, 6
v_lshl_add_u32 v6, v5, 2, s81        ; row0
v_mul_u32_u24 v6, 1280, v6
s_mul_i32 s82, {J8}, 160
v_lshl_add_u32 v6, v4, 4, v6
v_add_u32 v6, s82, v6                ; voff
v_subrev_u32 v7, 3840, v6
s_mul_i32 s83, {J8}, 640
v_lshl_add_u32 v8, v4, 6, s83
; h addresses
s_cmp_eq_u32 {WV}, 2
s_cselect_b32 s84, {CH2}, {CH0}
s_and_b32 s85, {WV}, 1
s_add_u32 s84, s84, s85
s_lshl_b32 s84, s84, 12
v_subrev_u32 v9, 16, v2
v_cmp_eq_u32 vcc, 0, v1
v_mov_b32 v10, {hex(OOB)}
v_cndmask_b32 v9, v9, v10, vcc
v_add_u32 v10, 1008, v2
s_waitcnt lgkmcnt(0)""")
        for j in range(3): g(f"buffer_load_dwordx4 v[{K0+4*j}:{K0+4*j+3}], v7, {srd(S_K)}, 0 offen offset:{1280*j}")
        for j in range(4): g(f"buffer_load_dwordx4 v[{K0+12+4*j}:{K0+12+4*j+3}], v6, {srd(S_K)}, 0 offen offset:{1280*j}")
        for j in range(4): g(f"buffer_load_dwordx4 v[{V0+4*j}:{V0+4*j+3}], v6, {srd(S_V)}, 0 offen offset:{1280*j}")
        for j in range(4): g(f"buffer_load_dwordx4 v[{SK0+4*j}:{SK0+4*j+3}], v8, {srd(S_SK)}, 0 offen offset:{16*j}")
        for p in range(4):
            g(f"buffer_load_dwordx4 v[{H0+8*p+4}:{H0+8*p+7}], v2, {srd(S_HK)}, s84 offen offset:{1024*p}")
            if p == 0: g(f"buffer_load_dwordx4 v[{H0}:{H0+3}], v9, {srd(S_HK)}, s84 offen")
            else: g(f"buffer_load_dwordx4 v[{H0+8*p}:{H0+8*p+3}], v10, {srd(S_HK)}, s84 offen offset:{1024*(p-1)}")
        self.qloads()
        g(f"""v_mov_b32 v108, 0
v_mov_b32 v109, 0
v_mov_b32 v110, 0
v_mov_b32 v111, 0
v_mul_u32_u24 v112, 9363, v1
v_lshrrev_b32 v112, 16, v112         ; lane/7
v_mul_u32_u24 v113, 7, v112
v_sub_u32 v113, v1, v113             ; lane%7
v_mul_u32_u24 v112, {HCS}, v112
v_lshl_add_u32 v112, v113, 4, v112
s_mul_i32 s85, {WV}, {HCH}
v_add_u32 v112, s85, v112
s_bfm_b64 exec, 56, 0
ds_write_b128 v112, v[108:111]
s_mov_b64 exec, -1
s_mul_i32 s86, {WV}, {GCH}
s_add_u32 s86, s86, {G0}
v_add_u32 v113, s86, v2
ds_write_b128 v113, v[108:111]
ds_write_b128 v113, v[108:111] offset:1024
s_mov_b64 exec, 0x7f
ds_write_b128 v113, v[108:111] offset:2048
s_mov_b64 exec, -1
v_add_u32 v11, s85, v2
v_sub_u32 v112, 15, v5
v_lshrrev_b32 v113, 1, v112
v_add_u32 v113, v113, v4
v_and_b32 v113, 7, v113
v_and_b32 v112, 1, v112
v_lshlrev_b32 v112, 3, v112
v_lshl_add_u32 v112, v113, 4, v112
v_lshl_add_u32 v112, v4, 10, v112
v_add_u32 v112, {T0}, v112
v_cmp_gt_u32 vcc, 6, v3
v_cmp_gt_u32 s[28:29], 16, v5
s_and_b64 s[28:29], s[28:29], vcc
s_mul_i32 s87, {WV}, 3
s_sub_u32 s87, 5, s87
s_lshl_b32 s88, {J8}, 5
s_add_u32 s88, s88, {CC}
s_mul_i32 s88, s88, 10240""")
        for n in range(4):
            g(f"""v_add_u32 v113, {64*n}, v1
v_mul_u32_u24 v114, 21846, v113
v_lshrrev_b32 v114, 16, v114         ; ch = z/3
v_mul_u32_u24 v115, 3, v114
v_sub_u32 v115, v113, v115
v_add_u32 v115, s87, v115            ; unit
v_lshlrev_b32 v124, 7, v114
v_lshl_add_u32 v{120+n}, v115, 4, v124
v_cmp_gt_u32 vcc, 80, v114
v_cmp_gt_u32 s[90:91], 8, v115
s_and_b64 vcc, vcc, s[90:91]
v_mov_b32 v125, {hex(OOB)}
v_cndmask_b32 v{120+n}, v125, v{120+n}, vcc
v_lshrrev_b32 v114, 3, v114
v_add_u32 v115, v115, v114
v_and_b32 v115, 7, v115
v_lshl_add_u32 v{116+n}, v115, 4, v124
v_add_u32 v{116+n}, {T0}, v{116+n}""")
        g(f"""s_mov_b32 s90, 0x05040100
s_mov_b32 s91, 0x07060302
s_mov_b32 s92, 0xffff0000
s_barrier""")
        self.stamp(1)
        g("s_waitcnt vmcnt(11)")
        self.stamp(2)
        g("s_mov_b64 exec, s[28:29]")
        for e in range(8):
            dw, hi = e >> 1, e & 1
            P = 128 + 6 * (e & 1); A = 140 + 4 * (e & 1); U = 148 + 4 * (e & 1); O = 156 + 2 * (e & 1)
            sel = 's91' if hi else 's90'
            s01 = SK0 + 4 * (e >> 1) + 2 * (e & 1); s23 = s01 + 1
            for j in range(1, 7):
                g(f"v_perm_b32 v{P+j-1}, v{K0+4*(j-1)+dw}, v{K0+4*j+dw}, {sel}")
            for o in range(4):
                g(f"v_dot2_f32_bf16 v{A+o}, v{P+o+2}, v{s01}, 0")
            for o in range(4):
                g(f"v_dot2_f32_bf16 v{A+o}, v{P+o}, v{s23}, v{A+o}")
            for o in range(4):
                if hi: g(f"v_and_b32 v{U+o}, s92, v{V0+4*o+dw}")
                else: g(f"v_lshlrev_b32 v{U+o}, 16, v{V0+4*o+dw}")
            g(f"v_pk_mul_f32 v[{A}:{A+1}], v[{A}:{A+1}], v[{U}:{U+1}]")
            g(f"v_pk_mul_f32 v[{A+2}:{A+3}], v[{A+2}:{A+3}], v[{U+2}:{U+3}]")
            g(f"v_cvt_pk_bf16_f32 v{O}, v{A+3}, v{A+2}")
            g(f"v_cvt_pk_bf16_f32 v{O+1}, v{A+1}, v{A}")
            g(f"ds_write_b64 v112, v[{O}:{O+1}] offset:{128*e}")
        g("s_mov_b64 exec, -1\ns_waitcnt lgkmcnt(0)")
        for n in range(4): g(f"ds_read_b128 v[{128+4*n}:{131+4*n}], v{116+n}")
        for n in range(4):
            g(f"s_waitcnt lgkmcnt({3-n})\nbuffer_store_dwordx4 v[{128+4*n}:{131+4*n}], v{120+n}, {srd(S_WS)}, s88 offen")
        g(f"""v_mov_b32 v144, 1
v_mov_b32 v145, 0
s_lshl_b32 s89, {CC}, 2
s_add_u32 s89, s89, {WV}
s_lshl_b32 s89, s89, 2
s_add_u32 s89, s89, {FLB}
s_waitcnt vmcnt(0)
s_mov_b64 exec, 1
buffer_store_dword v144, v145, {srd(S_WS)}, s89 offen
s_mov_b64 exec, -1""")
        self.stamp(3)
        for p in range(4):
            W = H0 + 8 * p
            B = 128 + 18 * (p & 1)
            Wp, O, Op = B, B + 6, B + 12
            off = 112 + 1024 * p
            g(f"ds_write_b128 v11, v[{W+4}:{W+7}] offset:{7*HCS+off}")
            g(f"ds_write_b128 v11, v[{W+2}:{W+5}] offset:{3*HCS+off}")
            for k in range(6): g(f"v_alignbit_b32 v{O+k}, v{W+k+1}, v{W+k}, 16")
            g(f"ds_write_b128 v11, v[{O}:{O+3}] offset:{0*HCS+off}")
            g(f"ds_write_b128 v11, v[{O+2}:{O+5}] offset:{4*HCS+off}")
            for k in range(6): g(f"v_alignbit_b32 v{Op+k}, v{W+k+2}, v{W+k+1}, 16")
            g(f"ds_write_b128 v11, v[{Op}:{Op+3}] offset:{2*HCS+off}")
            g(f"ds_write_b128 v11, v[{Op+2}:{Op+5}] offset:{6*HCS+off}")
            for k in range(6): g(f"v_mov_b32 v{Wp+k}, v{W+k+1}")
            g(f"ds_write_b128 v11, v[{Wp}:{Wp+3}] offset:{1*HCS+off}")
            g(f"ds_write_b128 v11, v[{Wp+2}:{Wp+5}] offset:{5*HCS+off}")
            if p == 1: g("s_waitcnt lgkmcnt(0)")
            if p == 2: g("s_waitcnt lgkmcnt(8)")
        g("s_waitcnt lgkmcnt(0)")
        self.stamp(4)
        g("s_branch L_p1")

    def w2_unit_loads(self, unit, stage):
        g = self
        g(f"""s_mul_i32 s80, {unit}, 1171
s_lshr_b32 s80, s80, 16
s_mul_i32 s81, s80, 56
s_sub_u32 s81, {unit}, s81           ; J
s_mul_i32 s82, s81, 9363
s_lshr_b32 s82, s82, 16              ; p = J/7
s_mul_i32 s83, s82, 7
s_sub_u32 s83, s81, s83              ; z
s_mul_i32 s82, s82, 216
s_lshl_b32 s84, s83, 5               ; 32 z
s_cmp_gt_u32 s83, 3
s_cselect_b32 s85, -20, 0            ; z>3: 108 + 32(z-4) = 32z - 20
s_add_u32 s84, s84, s85
s_add_u32 s82, s82, s84
s_cmp_eq_u32 s83, 3
s_cselect_b32 s85, 108, 16           ; delta
s_cselect_b32 s86, {hex(OOB)}, 0
v_add_u32 v21, s86, v20
s_mul_i32 s82, s82, 1280
s_mul_i32 s80, s80, 160
s_add_u32 s82, s82, s80
s_mul_i32 s85, s85, 1280
s_bfm_b64 exec, 40, 0""")
        for n in range(8):
            g(f"s_add_u32 s87, s82, {(n>>1)*4*1280}")
            if n & 1: g("s_add_u32 s87, s87, s85")
            g(f"s_add_u32 m0, {stage}, {640*n}")
            g(f"buffer_load_dwordx4 v{21 if n >= 6 else 20}, {srd(S_W2)}, s87 offen lds")
        g("s_mov_b64 exec, -1")
    def w2_unit_pack(self, unit, vaddr, rb):
        g = self
        for t in range(5):
            g(f"ds_read_b64_tr_b16 v[{rb+4*t}:{rb+4*t+1}], {vaddr} offset:{8*t}")
            g(f"ds_read_b64_tr_b16 v[{rb+4*t+2}:{rb+4*t+3}], {vaddr} offset:{8*t+640}")
        g(f"s_mul_i32 s80, {unit}, 5120\ns_add_u32 s80, s80, {hex(W2P)}\ns_add_u32 s81, s80, 4096")
        for t in range(5):
            g(f"s_waitcnt lgkmcnt({8-2*t})")
            so, off = ('s80', 1024*t) if t < 4 else ('s81', 0)
            g(f"buffer_store_dwordx4 v[{rb+4*t}:{rb+4*t+3}], v2, {srd(S_WS)}, {so} offen offset:{off} sc1")

    def p0_wave3(self):
        g = self
        g("L_w3:")
        g(f"""v_mov_b32 v16, -1
v_mov_b32 v17, -1
v_mov_b32 v18, -1
v_mov_b32 v19, -1
v_mov_b32 v22, 0
v_lshrrev_b32 v23, 5, v1
v_and_b32 v24, 31, v1
v_lshlrev_b32 v24, 4, v24
v_lshl_add_u32 v23, v23, 12, v24
v_lshlrev_b32 v24, 2, v1              ; 4*lane
v_lshlrev_b32 v25, 5, v1
v_lshlrev_b32 v26, 6, v1
v_cmp_eq_u32 vcc, 3, v1
v_cndmask_b32 v27, 0, 1, vcc
s_lshl_b32 s80, {J8}, 2
s_add_u32 s80, s80, {MQ}              ; G64
s_mul_i32 s81, s80, {640*128}
s_mul_i32 s82, {JD}, {80*128}
s_add_u32 s81, s81, s82
s_add_u32 s81, s81, {hex(YB)}
s_add_u32 s82, s81, 4096
s_add_u32 s83, s81, 8192
s_lshl_b32 s84, s80, 14
s_lshl_b32 s85, {JD}, 9
s_add_u32 s84, s84, s85
s_add_u32 s84, s84, {hex(EX)}
s_mul_i32 s93, s2, 3
s_sub_u32 s93, s93, 320               ; 160 + 3(wg-160)
s_cmp_lt_u32 s2, 160
s_cselect_b32 s93, s2, s93
s_mul_i32 s94, s2, 3277
s_lshr_b32 s94, s94, 16
s_mul_i32 s95, s94, 20
s_sub_u32 s95, s2, s95                ; kappa
; W2 voffset
v_mul_u32_u24 v3, 6554, v1
v_lshrrev_b32 v3, 16, v3
v_mul_u32_u24 v4, 10, v3
v_sub_u32 v4, v1, v4
v_mul_u32_u24 v3, 1280, v3
v_lshl_add_u32 v20, v4, 4, v3
s_waitcnt lgkmcnt(0)""")
        for n in range(10):
            so = ('s81', 's82', 's83')[n // 4]
            g(f"buffer_store_dwordx4 v[16:19], v2, {srd(S_WS)}, {so} offen offset:{1024*(n%4)} sc1")
        for lay in range(2):
            for wp in range(2):
                g(f"s_add_u32 s85, s84, {lay*524288 + wp*8192}\nbuffer_store_dwordx4 v[16:19], v23, {srd(S_WS)}, s85 offen sc1")
        g(f"""s_mov_b64 exec, 0xf
s_lshl_b32 s85, {CC}, 4
s_add_u32 s85, s85, {FLB}
buffer_store_dword v27, v24, {srd(S_WS)}, s85 offen sc1
s_lshl_b32 s85, {MQ}, 7
s_lshl_b32 s86, {JD}, 2
s_add_u32 s85, s85, s86
s_add_u32 s85, s85, {FLB}
buffer_store_dword v22, v25, {srd(S_WS)}, s85 offen offset:1024 sc1
s_lshl_b32 s85, {MH}, 8
s_lshl_b32 s86, {GG}, 2
s_add_u32 s85, s85, s86
s_add_u32 s85, s85, {FLB}
buffer_store_dword v22, v26, {srd(S_WS)}, s85 offen offset:1536 sc1
s_mov_b64 exec, 1
s_lshl_b32 s85, {CC}, 2
s_add_u32 s85, s85, {FLB}
buffer_store_dword v22, v22, {srd(S_WS)}, s85 offen offset:512 sc1
s_lshl_b32 s88, s93, 2
s_add_u32 s88, s88, {hex(PF2)}
s_lshl_b32 s89, s94, 7
s_lshl_b32 s86, s95, 2
s_add_u32 s89, s89, s86
s_add_u32 s89, s89, {hex(PF1)}
s_getreg_b32 s90, hwreg(HW_REG_XCC_ID)
s_and_b32 s90, s90, 0xf
s_or_b32 s90, s90, 0x80
s_cmp_lt_u32 s2, 160
s_cbranch_scc0 L_w3_b""")
        g(f"""buffer_store_dword v22, v22, {srd(S_WS)}, s89 offen sc1
buffer_store_dword v22, v22, {srd(S_WS)}, s88 offen sc1
s_mov_b64 exec, -1
v_mul_u32_u24 v3, 2341, v1
v_lshrrev_b32 v3, 16, v3              ; lane/28
v_mul_u32_u24 v4, 28, v3
v_sub_u32 v4, v1, v4
v_mul_u32_u24 v3, 3456, v3
v_lshl_add_u32 v3, v4, 4, v3
s_mul_i32 s80, s94, 432
v_add_u32 v28, s80, v3                ; W1 voffset
s_mul_i32 s80, s95, 13108
s_lshr_b32 s80, s80, 16               ; p = kappa/5
s_mul_i32 s81, s80, 5
s_sub_u32 s81, s95, s81               ; z
s_mul_i32 s80, s80, 160
s_lshl_b32 s82, s81, 3
s_cmp_gt_u32 s81, 2
s_cselect_b32 s83, 56, 0              ; z=3: 24+56=80, z=4: 88
s_add_u32 s82, s82, s83
s_add_u32 s80, s80, s82               ; base d
s_cmp_eq_u32 s81, 2
s_cselect_b32 s83, {76*3456}, 0
s_mul_i32 s80, s80, 3456
s_bfm_b64 exec, 56, 0""")
        for n in range(16):
            g(f"s_add_u32 s82, s80, {(20*(n>>2) + 2*(n&3))*3456}")
            if (n & 3) >= 2: g("s_add_u32 s82, s82, s83")
            g(f"s_mov_b32 m0, {SC + 896*n}")
            g(f"buffer_load_dwordx4 v28, {srd(S_W1)}, s82 offen lds")
        g(f"s_mov_b64 exec, -1\ns_mov_b32 s91, {SC+14336}")
        self.w2_unit_loads('s93', 's91')
        self.w3_common1(24)
        g(f"""v_mul_u32_u24 v30, 448, v29
v_lshl_add_u32 v30, v31, 3, v30
v_add_u32 v30, {SC}, v30
v_mul_u32_u24 v32, 160, v29
v_mul_u32_u24 v33, 40, v31
v_add3_u32 v32, v32, v33, s91
s_mul_i32 s80, s94, {2*143360}
s_mul_i32 s81, s95, 7168
s_add_u32 s80, s80, s81
s_add_u32 s80, s80, {hex(W1P)}
s_waitcnt vmcnt(0)""")
        self.stamp(2)
        for gam in range(2):
            rb = 40 + 28 * gam
            for t in range(7):
                g(f"ds_read_b64_tr_b16 v[{rb+4*t}:{rb+4*t+1}], v30 offset:{216*gam+32*t}")
                g(f"ds_read_b64_tr_b16 v[{rb+4*t+2}:{rb+4*t+3}], v30 offset:{216*gam+32*t+4*448}")
            g(f"s_add_u32 s81, s80, {gam*143360}\ns_add_u32 s82, s81, 4096")
            for t in range(7):
                g(f"s_waitcnt lgkmcnt({12-2*t})")
                so, off = ('s81', 1024*t) if t < 4 else ('s82', 1024*(t-4))
                g(f"buffer_store_dwordx4 v[{rb+4*t}:{rb+4*t+3}], v2, {srd(S_WS)}, {so} offen offset:{off} sc1")
        self.w2_unit_pack('s93', 'v32', 96)
        g(f"""v_mov_b32 v27, 1
s_waitcnt vmcnt(0)
s_mov_b64 exec, 1
buffer_store_dword v27, v22, {srd(S_WS)}, s89 offen sc1
buffer_store_dword v27, v22, {srd(S_WS)}, s88 offen sc1
s_mov_b64 exec, -1
s_branch L_w3_c""")
        g(f"""L_w3_b:
s_mov_b64 exec, 7
buffer_store_dword v22, v24, {srd(S_WS)}, s88 offen sc1
s_mov_b64 exec, -1""")
        for u in range(3):
            g(f"s_add_u32 s92, s93, {u}\ns_mov_b32 s91, {SC+5120*u}")
            self.w2_unit_loads('s92', 's91')
        self.w3_common1(24)
        g(f"""v_mul_u32_u24 v32, 160, v29
v_mul_u32_u24 v33, 40, v31
v_add_u32 v32, v32, v33
v_add_u32 v32, {SC}, v32
v_add_u32 v33, 5120, v32
v_add_u32 v34, 10240, v32
s_waitcnt vmcnt(0)""")
        self.stamp(2)
        for u in range(3):
            g(f"s_add_u32 s92, s93, {u}")
            self.w2_unit_pack('s92', f'v{32+u}', 40 + 20*u)
        g(f"""v_mov_b32 v27, 1
s_waitcnt vmcnt(0)
s_mov_b64 exec, 7
buffer_store_dword v27, v24, {srd(S_WS)}, s88 offen sc1
s_mov_b64 exec, -1
L_w3_c:""")
        self.stamp(3)
        g(f"""v_and_b32 v3, 7, v1
v_lshlrev_b32 v3, 2, v3
s_lshl_b32 s80, {J8}, 5
s_mov_b32 s81, 0x80808080
s_mul_i32 s82, s90, 0x01010101""")
        self.poll(f"buffer_load_dword v4, v3, {srd(S_DBG)}, s80 offen sc1", "v_and_b32 v5, s81, v4\nv_cmp_ne_u32 vcc, s81, v5")
        g(f"""v_cmp_ne_u32 vcc, s82, v4
s_cmp_lg_u64 vcc, 0
s_cselect_b32 {SLOW}, 1, 0
v_lshlrev_b32 v3, 3, v1
s_cmp_eq_u32 {SLOW}, 0
s_cbranch_scc1 L_w3_fast""")
        g(f"""v_and_b32 v3, 3, v1
v_lshlrev_b32 v3, 2, v3
s_lshl_b32 s80, {CC}, 4
s_add_u32 s80, s80, {FLB}""")
        self.poll(f"buffer_load_dword v4, v3, {srd(S_WS)}, s80 offen sc1", "v_cmp_gt_u32 vcc, 1, v4")
        g(f"""buffer_wbl2 sc1
s_waitcnt vmcnt(0)
s_lshl_b32 s80, {CC}, 2
s_add_u32 s80, s80, {FLB}
s_mov_b64 exec, 1
buffer_store_dword v27, v22, {srd(S_WS)}, s80 offen offset:512 sc1
s_mov_b64 exec, -1
v_and_b32 v3, 31, v1
v_lshlrev_b32 v3, 2, v3""")
        self.poll(f"buffer_load_dword v4, v3, {srd(S_WS)}, {FLB} offen offset:512 sc1", "v_cmp_gt_u32 vcc, 1, v4")
        g("buffer_inv sc1\ns_waitcnt vmcnt(0)\ns_branch L_w3_kv\nL_w3_fast:")
        self.poll(f"buffer_load_dwordx2 v[4:5], v3, {srd(S_WS)}, {FLB} offen sc1", "v_min_u32 v4, v4, v5\nv_cmp_gt_u32 vcc, 1, v4")
        g("L_w3_kv:")
        self.stamp(4)
        g(f"""v_mul_u32_u24 v3, 7282, v1
v_lshrrev_b32 v3, 16, v3              ; lane/9
v_mul_u32_u24 v4, 9, v3
v_sub_u32 v4, v1, v4                  ; lane%9
v_mul_u32_u24 v3, 10240, v3
v_lshl_add_u32 v3, v4, 4, v3
v_cmp_eq_u32 vcc, 8, v4
v_mov_b32 v5, {hex(OOB)}
v_cndmask_b32 v3, v3, v5, vcc
s_mul_i32 s80, {J8}, {32*10240 - 80*128}
s_lshl_b32 s81, {CH0}, 7
s_add_u32 s81, s81, s80
s_lshl_b32 s82, {CH2}, 7
s_add_u32 s82, s82, s80
v_mov_b32 v6, {CTL}
v_mov_b32 v8, {SLOW}
v_mov_b32 v9, {DEAD}
ds_write_b64 v6, v[8:9]
s_bfm_b64 exec, 63, 0""")
        for n in range(5):
            if n == 4: g(f"s_bfm_b64 exec, 36, 0")
            for slot in range(3):
                base = 's82' if slot == 2 else 's81'
                g(f"s_add_u32 s83, {base}, {7*n*10240 + (128 if slot == 1 else 0)}")
                g(f"s_mov_b32 m0, {G0 + slot*GCH + (15+7*n)*144}")
                g(f"buffer_load_dwordx4 v3, {srd(S_WS)}, s83 offen sc1 lds")
        g("s_mov_b64 exec, -1\ns_waitcnt vmcnt(0) lgkmcnt(0)")

    def w3_common1(self, ndma):
        g = self
        L = self.lab('pc')
        g(f"""s_getpc_b64 s[{S_CODE}:{S_CODE+1}]
{L}:
s_mov_b32 s{S_CODE+2}, L_end-{L}
s_mov_b32 s{S_CODE+3}, 0x20000
v_lshlrev_b32 v3, 7, v1
buffer_load_dword v5, v3, {srd(S_CODE)}, 0 offen
v_add_u32 v3, 8192, v3
buffer_load_dword v6, v3, {srd(S_CODE)}, 0 offen
v_add_u32 v3, 8192, v3
buffer_load_dword v7, v3, {srd(S_CODE)}, 0 offen""")
        self.qloads()
        g(f"""v_lshrrev_b32 v29, 4, v1
v_bfe_u32 v30, v1, 2, 2
v_lshl_add_u32 v29, v29, 3, v30
v_and_b32 v31, 3, v1
v_mov_b32 v8, s90
s_lshl_b32 s80, {J8}, 5
s_add_u32 s80, s80, {CC}
s_waitcnt vmcnt({ndma+6})
s_mov_b64 exec, 1
buffer_store_byte v8, v22, {srd(S_DBG)}, s80 offen sc1
s_mov_b64 exec, -1
s_barrier""")
        self.stamp(1)

    def p1(self):
        g = self
        ACC, WR, GR = 16, 32, 64
        g("L_p1:\ns_barrier")
        self.stamp(5)
        g(f"""v_mov_b32 v3, {CTL}
ds_read_b64 v[4:5], v3
s_and_b32 s80, {CH0}, -2
s_lshl_b32 s80, s80, 1
s_load_dwordx2 s[82:83], s[30:31], s80
s_and_b32 s81, {CH2}, -2
s_lshl_b32 s81, s81, 1
s_load_dword s84, s[30:31], s81
v_and_b32 v6, 15, v1                  ; i / n
v_lshrrev_b32 v7, 5, v1               ; a
v_bfe_u32 v8, v1, 4, 1                ; sigma
v_and_b32 v9, 7, v6
v_mul_u32_u24 v9, {HCS}, v9
v_lshrrev_b32 v10, 3, v6
v_sub_u32 v10, v10, v7
v_add_u32 v10, 1, v10
v_lshl_add_u32 v9, v10, 4, v9
v_mul_u32_u24 v10, 144, v6
v_sub_u32 v11, 1, v7
v_lshl_add_u32 v10, v11, 4, v10
s_waitcnt lgkmcnt(0)
v_readfirstlane_b32 {SLOW}, v4
v_readfirstlane_b32 {DEAD}, v5
s_bitcmp1_b32 {CH0}, 0
s_cbranch_scc1 L_d_odd
s_lshl_b32 s85, s82, 16
s_and_b32 s86, s82, 0xffff0000
s_branch L_d_done
L_d_odd:
s_and_b32 s85, s82, 0xffff0000
s_lshl_b32 s86, s83, 16
L_d_done:
s_lshl_b32 s87, s84, 16
s_and_b32 s84, s84, 0xffff0000
s_bitcmp1_b32 {CH2}, 0
s_cselect_b32 s87, s84, s87
; is_t1 = s88
s_and_b32 s80, {CC}, 1
s_cmp_eq_u32 {WV}, 3
s_cselect_b32 s80, s80, 0
s_cmp_eq_u32 {WV}, 2
s_cselect_b32 s80, 1, s80
s_xor_b32 s88, s80, 1
s_mov_b32 s89, 0
L_half:
s_min_u32 s90, {WV}, 2
s_cmp_eq_u32 {WV}, 2
s_cselect_b32 s90, s89, s90           ; slot
s_lshl_b32 s91, s88, 4                ; s0blk
s_lshl_b32 s92, s88, 3
s_add_u32 s92, s92, 8                 ; M0
s_mul_i32 s93, s89, s88
s_lshl_b32 s93, s93, 3                ; m0
s_mul_i32 s80, s90, {HCH}
s_lshl_b32 s81, s93, 7
s_add_u32 s80, s80, s81
s_lshl_b32 s81, s92, 7
v_mad_u32_u24 v3, v8, s81, v9
v_add_u32 v3, s80, v3                 ; vW
s_mul_i32 s80, s90, {GCH}
s_sub_u32 s81, s91, s93
s_add_u32 s81, s81, 8
s_mul_i32 s81, s81, 144
s_add_u32 s80, s80, s81
s_add_u32 s80, s80, {G0}
s_mul_i32 s81, s92, 144
v_mul_u32_u24 v4, s81, v8
v_sub_u32 v4, v10, v4
v_add_u32 v4, s80, v4                 ; vG""")
        def wreg(idx): return f"v[{WR+4*(idx%8)}:{WR+4*(idx%8)+3}]"
        def greg(t): return f"v[{GR+4*(t%4)}:{GR+4*(t%4)+3}]"
        def rdW(idx): g(f"ds_read_b128 {wreg(idx)}, v3 offset:{32*idx}")
        def rdG(t):
            mu, jj = t >> 2, 3 - (t & 3)
            g(f"ds_read_b128 {greg(t)}, v4 offset:{144*(7-mu) + 32*(3-jj)}")
        seq = []
        for x in ('W0','W1','W2','W3','G0','W4','G1','W5','G2','W6'):
            (rdW if x[0] == 'W' else rdG)(int(x[1:])); seq.append(x)
        g(f"s_cmp_lg_u32 s93, 0\ns_cbranch_scc1 L_noz")
        for r in range(16): g(f"v_mov_b32 v{ACC+r}, 0")
        g("L_noz:")
        for t in range(32):
            need = max(seq.index(f'W{t+3}'), seq.index(f'G{t}'))
            g(f"s_waitcnt lgkmcnt({len(seq)-1-need})")
            for u in range(4):
                g(f"v_mfma_f32_16x16x32_bf16 v[{ACC+4*u}:{ACC+4*u+3}], {wreg(t+u)}, {greg(t)}, v[{ACC+4*u}:{ACC+4*u+3}]")
                if u == 0 and t + 3 < 32: rdG(t+3); seq.append(f'G{t+3}')
                if u == 1 and t + 7 < 35: rdW(t+7); seq.append(f'W{t+7}')
        g(f"s_cmp_lg_u32 s89, 0\ns_cbranch_scc1 L_regok\nv_lshlrev_b32 v80, 2, v1\ns_mov_b32 s81, 0x80808080")
        self.poll(f"buffer_load_dword v81, v80, {srd(S_DBG)}, 0 offen sc1", "v_and_b32 v81, s81, v81\nv_cmp_ne_u32 vcc, s81, v81")
        g(f"""L_regok:
s_cmp_gt_u32 s88, s89
s_cbranch_scc1 L_noepi
s_mul_i32 s80, s90, {GCH}
s_add_u32 s81, s91, 15
s_mul_i32 s81, s81, 144
s_add_u32 s80, s80, s81
s_add_u32 s80, s80, {G0 + 120 - 96}
v_lshrrev_b32 v80, 4, v1
v_mul_u32_u24 v81, 144, v6
v_lshlrev_b32 v82, 3, v80
v_sub_u32 v81, v81, v82
v_add_u32 v81, s80, v81""")
        for u in range(4): g(f"ds_read_b64 v[{84+2*u}:{85+2*u}], v81 offset:{96-32*u}")
        g(f"""s_cmp_eq_u32 s90, 1
s_cselect_b32 s80, s86, s85
s_cselect_b32 s81, 1, 0
s_add_u32 s81, s81, {CH0}
s_cmp_eq_u32 s90, 2
s_cselect_b32 s80, s87, s80           ; D
s_cselect_b32 s81, {CH2}, s81         ; channel
s_mul_i32 s82, s91, 640
s_add_u32 s81, s81, s82
s_lshl_b32 s81, s81, 7
s_add_u32 s81, s81, {hex(YB)}
s_mov_b32 s82, {640*128}
v_mul_lo_u32 v82, v6, s82
v_and_b32 v83, 1, v80
v_lshl_add_u32 v82, v83, 5, v82
v_lshrrev_b32 v83, 1, v80
v_lshl_add_u32 v82, v83, 4, v82
s_mov_b32 s82, 0xffff0000
s_waitcnt lgkmcnt(0)""")
        for u in range(4):
            d0, d1 = 84 + 2*u, 85 + 2*u
            g(f"""v_and_b32 v92, s82, v{d1}
v_lshlrev_b32 v93, 16, v{d1}
v_and_b32 v94, s82, v{d0}
v_lshlrev_b32 v95, 16, v{d0}
v_fmac_f32 v{ACC+4*u}, s80, v92
v_fmac_f32 v{ACC+4*u+1}, s80, v93
v_fmac_f32 v{ACC+4*u+2}, s80, v94
v_fmac_f32 v{ACC+4*u+3}, s80, v95
v_cvt_pk_bf16_f32 v{96+2*u}, v{ACC+4*u}, v{ACC+4*u+1}
v_cvt_pk_bf16_f32 v{97+2*u}, v{ACC+4*u+2}, v{ACC+4*u+3}""")
        for up in range(2):
            b = 96 + 4*up
            g(f"v_permlane16_swap_b32 v{b}, v{b+2}\nv_permlane16_swap_b32 v{b+1}, v{b+3}")
            g(f"buffer_store_dwordx4 v[{b}:{b+3}], v82, {srd(S_WS)}, s81 offen offset:{64*up} sc1")
        g(f"""L_noepi:
s_add_u32 s89, s89, 1
s_cmp_eq_u32 s89, 2
s_cbranch_scc1 L_p1_done
s_cmp_eq_u32 {WV}, 3
s_cselect_b32 s80, s88, 1
s_cmp_lg_u32 s80, 0
s_cbranch_scc1 L_half
L_p1_done:""")
        self.stamp(6)

    def pack_poll(self):
        g = self
        g(f"""v_min_u32 v80, 19, v1
s_lshr_b32 s80, {GG}, 1
s_lshl_b32 s80, s80, 5
v_add_u32 v80, s80, v80
v_subrev_u32 v81, 32, v1
v_min_u32 v81, 13, v81
s_mul_i32 s80, {JD}, 56
s_mul_i32 s81, {WV}, 14
s_add_u32 s80, s80, s81
s_add_u32 s80, s80, 256
v_add_u32 v81, s80, v81
v_cmp_gt_u32 vcc, 32, v1
v_cndmask_b32 v80, v81, v80, vcc
v_lshlrev_b32 v80, 2, v80
s_mov_b32 s80, {hex(PF1)}""")
        self.poll(f"buffer_load_dword v81, v80, {srd(S_WS)}, s80 offen sc1", "v_cmp_gt_u32 vcc, 1, v81")
    def w1_dma(self):
        g = self
        g(f"""s_mul_i32 s80, {GG}, 143360
s_mul_i32 s81, {WV}, {35*1024}
s_add_u32 s80, s80, s81
s_add_u32 s80, s80, {hex(W1P)}""")
        for n in range(35):
            if n % 4 == 0:
                g(f"s_add_u32 m0, s81, {1024*n}")
                if n: g("s_add_u32 s80, s80, 4096")
            g(f"buffer_load_dwordx4 v2, {srd(S_WS)}, s80 offen offset:{1024*(n%4)} sc1 lds")
    def w2_loads(self, lo, hi):
        g = self
        g(f"""s_mul_i32 s80, {JD}, {56*5120}
s_mul_i32 s81, {WV}, {14*5120}
s_add_u32 s80, s80, s81
s_add_u32 s80, s80, {hex(W2P + 1024*lo)}""")
        for n, fr in enumerate(range(lo, hi)):
            if n and n % 4 == 0: g("s_add_u32 s80, s80, 4096")
            g(f"buffer_load_dwordx4 {self.w2reg(fr)}, v2, {srd(S_WS)}, s80 offen offset:{1024*(n%4)} sc1")

    def p2_entry(self):
        g = self
        g("s_barrier")
        self.pack_poll()
        self.w1_dma()
        g("s_waitcnt vmcnt(20)")
        self.w2_loads(0, 40)
        g("s_waitcnt vmcnt(30)")
        self.w2_loads(40, 70)
        self.stamp(7)
        g("s_mov_b32 s82, 0xffff0000")
        for k in range(10):
            g(f"v_lshlrev_b32 v{VX+2*k}, 16, v{VY+k}\nv_and_b32 v{VX+2*k+1}, s82, v{VY+k}")
        g(f"""s_lshl_b32 s80, {J8}, 2
s_add_u32 s80, s80, {MQ}
s_mul_i32 s80, s80, {640*128}
s_mul_i32 s81, {JD}, {80*128}
s_add_u32 s80, s80, s81
s_mul_i32 s81, {WV}, 2560
s_add_u32 s80, s80, s81
s_add_u32 s80, s80, {hex(YB)}
v_cmp_gt_u32 vcc, 32, v1
v_mov_b32 v16, {hex(OOB)}
v_cndmask_b32 v16, v16, v2, vcc
v_lshrrev_b32 v17, 3, v1
v_mul_u32_u24 v17, 160, v17
v_and_b32 v18, 7, v1
v_lshl_add_u32 v17, v18, 4, v17
s_mul_i32 s81, {WV}, 3200
s_add_u32 s81, s81, {SC}
v_add_u32 v17, s81, v17
v_mov_b32 v18, {SC + 12800}
v_add_u32 v19, 2560, v17
v_cndmask_b32 v18, v18, v19, vcc
v_lshrrev_b32 v19, 4, v1
v_mul_u32_u24 v19, 20, v19
v_bfe_u32 v20, v1, 2, 2
v_add_u32 v19, v19, v20
v_mul_u32_u24 v19, 160, v19
v_and_b32 v20, 3, v1
v_lshl_add_u32 v19, v20, 3, v19
s_lshl_b32 s81, {WV}, 5
s_add_u32 s81, s81, {SC}
v_add_u32 v19, s81, v19""")
        self.poll(f"""buffer_load_dwordx4 v[24:27], v2, {srd(S_WS)}, s80 offen sc1
buffer_load_dwordx4 v[28:31], v2, {srd(S_WS)}, s80 offen offset:1024 sc1
buffer_load_dwordx4 v[32:35], v16, {srd(S_WS)}, s80 offen offset:2048 sc1""",
"""v_max3_u32 v36, v24, v25, v26
v_max3_u32 v37, v27, v28, v29
v_max3_u32 v38, v30, v31, v32
v_max3_u32 v36, v33, v34, v36
v_max3_u32 v37, v35, v37, v38
v_max_u32 v36, v36, v37
v_cmp_eq_u32 vcc, -1, v36""")
        self.stamp(8)
        g(f"""ds_write_b128 v17, v[24:27]
ds_write_b128 v17, v[28:31] offset:1280
ds_write_b128 v18, v[32:35]
s_waitcnt lgkmcnt(0)
s_barrier""")
        for t in range(5): g(f"ds_read_b64_tr_b16 v[{24+2*t}:{25+2*t}], v19 offset:{640*t}")
        g(f"""s_lshl_b32 s80, {J8}, 1
s_add_u32 s80, s80, {MH}
s_lshl_b32 s80, s80, 2
s_add_u32 s80, s80, {WV}
s_mul_i32 s80, s80, {2*20480}
s_add_u32 s{SNF}, s80, {hex(NF)}""")
        for j in range(1, 10): g(f"s_add_u32 s{SNF+j}, s{SNF}, {4096*j}")
        g("s_waitcnt lgkmcnt(0)")
        for k in range(10):
            g(f"v_lshlrev_b32 v{VY+2*k}, 16, v{24+k}\nv_and_b32 v{VY+2*k+1}, s82, v{24+k}")
        g(f"v_pk_add_f32 v[24:25], v[{VY}:{VY+1}], v[{VY+2}:{VY+3}]\nv_pk_mul_f32 v[26:27], v[{VY}:{VY+1}], v[{VY}:{VY+1}]")
        for k in range(1, 10):
            if k > 1: g(f"v_pk_add_f32 v[24:25], v[24:25], v[{VY+2*k}:{VY+2*k+1}]")
            g(f"v_pk_fma_f32 v[26:27], v[{VY+2*k}:{VY+2*k+1}], v[{VY+2*k}:{VY+2*k+1}], v[26:27]")
        g(f"v_add_f32 v{VS3}, v24, v25\nv_add_f32 v{VS8}, v26, v27")

    def lny(self):
        g = self
        g("L_layer:")
        X = lambda k: f"v[{VX+2*k}:{VX+2*k+1}]"
        Y = lambda k: f"v[{VY+2*k}:{VY+2*k+1}]"
        g(f"""v_lshrrev_b32 v16, 4, v1
v_lshlrev_b32 v16, 3, v16
s_mul_i32 s80, {GG}, 216""")
        for t in range(7): g(f"buffer_load_dwordx2 v[{76+2*t}:{77+2*t}], v16, {srd(S_B1)}, s80 offen offset:{32*t}")
        S1, S2, S4, S5, S6, S7, T = 16, 18, 20, 22, 24, 26, 28
        P = lambda r: f"v[{r}:{r+1}]"
        for k in range(10):
            t = T + 2*(k & 1)
            g(f"v_pk_mul_f32 {P(t)}, {X(k)}, {Y(k)}")
            if k == 0:
                g(f"v_pk_mul_f32 {P(S2)}, {X(0)}, {X(0)}")
                g(f"v_pk_mul_f32 {P(S5)}, {X(0)}, {P(t)}\nv_pk_mul_f32 {P(S6)}, {P(t)}, {P(t)}\nv_pk_mul_f32 {P(S7)}, {P(t)}, {Y(0)}")
            else:
                if k == 1: g(f"v_pk_add_f32 {P(S1)}, {X(0)}, {X(1)}\nv_pk_add_f32 {P(S4)}, {P(T)}, {P(t)}")
                else: g(f"v_pk_add_f32 {P(S1)}, {P(S1)}, {X(k)}\nv_pk_add_f32 {P(S4)}, {P(S4)}, {P(t)}")
                g(f"v_pk_fma_f32 {P(S2)}, {X(k)}, {X(k)}, {P(S2)}")
                g(f"v_pk_fma_f32 {P(S5)}, {X(k)}, {P(t)}, {P(S5)}\nv_pk_fma_f32 {P(S6)}, {P(t)}, {P(t)}, {P(S6)}\nv_pk_fma_f32 {P(S7)}, {P(t)}, {Y(k)}, {P(S7)}")
        for i, s in ((0, S1), (1, S2), (3, S4), (4, S5), (5, S6), (6, S7)): g(f"v_add_f32 v{32+i}, v{s}, v{s+1}")
        g(f"v_mov_b32 v34, v{VS3}\nv_mov_b32 v39, v{VS8}")
        for i in range(0, 8, 2): g(f"v_permlane32_swap_b32 v{32+i}, v{33+i}")
        for i in range(4): g(f"v_add_f32 v{40+i}, v{32+2*i}, v{33+2*i}")
        g("v_permlane16_swap_b32 v40, v41\nv_permlane16_swap_b32 v42, v43")
        g("v_add_f32 v44, v40, v41\nv_add_f32 v45, v42, v43")
        g(f"""s_sub_u32 s80, {LAYER}, 1
s_lshl_b32 s80, s80, 19
s_lshl_b32 s81, s27, 8                ; (row/16)*4096
s_add_u32 s80, s80, s81
s_add_u32 s80, s80, {hex(EX)}
s_lshl_b32 s81, {JD}, 9
s_add_u32 s81, s81, s80
v_lshlrev_b32 v46, 3, v1
s_cmp_eq_u32 {SLOW}, 0
s_cbranch_scc1 L_exf
buffer_store_dwordx2 v[44:45], v46, {srd(S_WS)}, s81 offen sc1
s_branch L_exd
L_exf:
buffer_store_dwordx2 v[44:45], v46, {srd(S_WS)}, s81 offen
L_exd:""")
        self.stamp_l(9)
        loads = '\n'.join(f"buffer_load_dwordx2 v[{48+2*j}:{49+2*j}], v46, {srd(S_WS)}, s80 offen offset:{512*j} sc1" for j in range(8))
        chk = """v_max3_u32 v64, v48, v49, v50
v_max3_u32 v65, v51, v52, v53
v_max3_u32 v66, v54, v55, v56
v_max3_u32 v67, v57, v58, v59
v_max3_u32 v64, v60, v61, v64
v_max3_u32 v65, v62, v63, v65
v_max3_u32 v64, v64, v65, v66
v_max_u32 v64, v64, v67
v_cmp_eq_u32 vcc, -1, v64"""
        self.poll(loads, chk)
        self.stamp_l(10)
        g("""v_pk_add_f32 v[48:49], v[48:49], v[50:51]
v_pk_add_f32 v[52:53], v[52:53], v[54:55]
v_pk_add_f32 v[56:57], v[56:57], v[58:59]
v_pk_add_f32 v[60:61], v[60:61], v[62:63]
v_pk_add_f32 v[48:49], v[48:49], v[52:53]
v_pk_add_f32 v[56:57], v[56:57], v[60:61]
v_pk_add_f32 v[32:33], v[48:49], v[56:57]
v_mov_b32 v34, v32
v_mov_b32 v35, v33
v_permlane16_swap_b32 v32, v34
v_permlane16_swap_b32 v33, v35
v_mov_b32 v36, v32
v_mov_b32 v37, v34
v_mov_b32 v38, v33
v_mov_b32 v39, v35
v_permlane32_swap_b32 v32, v36
v_permlane32_swap_b32 v34, v37
v_permlane32_swap_b32 v33, v38
v_permlane32_swap_b32 v35, v39""")
        s1, s2, s3, s4, s5, s6, s7, s8 = 'v32', 'v36', 'v34', 'v37', 'v33', 'v38', 'v35', 'v39'
        g(f"""s_mov_b32 s82, {f32(1.0/640)}
s_mov_b32 s83, {f32(1e-5)}
s_mov_b32 s84, {f32(LOG2E)}
v_mul_f32 v40, s82, {s1}              ; m
v_mul_f32 v41, s82, {s2}
v_fma_f32 v41, -v40, v40, v41
v_max_f32 v41, 0, v41
v_add_f32 v41, s83, v41
v_rsq_f32 v42, v41                    ; r
v_fma_f32 v43, -v40, {s3}, {s4}       ; S4 - m S3
v_fma_f32 v44, -v40, {s4}, {s5}       ; S5 - m S4
v_mul_f32 v45, v40, {s8}
v_fma_f32 v45, -2.0, {s7}, v45        ; m S8 - 2 S7
v_fma_f32 v45, v40, v45, {s6}         ; S6 - 2m S7 + m^2 S8
v_fma_f32 v43, v42, v43, {s1}         ; sum x'
v_mul_f32 v45, v42, v45
v_fma_f32 v45, 2.0, v44, v45
v_fma_f32 v45, v42, v45, {s2}         ; sum x'^2
v_mul_f32 v43, s82, v43               ; m'
v_mul_f32 v45, s82, v45
v_fma_f32 v45, -v43, v43, v45
v_max_f32 v45, 0, v45
v_add_f32 v45, s83, v45
v_rsq_f32 v44, v45
v_mul_f32 v44, s84, v44               ; R
v_mul_f32 v46, v43, v44               ; m' R""")
        N = 64
        for k in range(10):
            c, t = 48 + 4*(k & 1), 50 + 4*(k & 1)
            g(f"v_pk_mul_f32 {P(c)}, {Y(k)}, v[42:43] op_sel_hi:[1,0]")
            g(f"v_pk_add_f32 {P(t)}, {X(k)}, v[40:41] op_sel_hi:[1,0] neg_lo:[0,1] neg_hi:[0,1]")
            g(f"v_pk_fma_f32 {X(k)}, {P(t)}, {P(c)}, {X(k)}")
            g(f"v_pk_fma_f32 {P(t)}, {X(k)}, v[44:45], v[46:47] op_sel_hi:[1,0,0] neg_lo:[0,0,1] neg_hi:[0,0,1]")
            g(f"v_cvt_pk_bf16_f32 v{N+k}, v{t}, v{t+1}")
            if k == 2:
                g(f"""s_lshr_b32 s80, s27, 4
s_mul_i32 s80, s80, 20480
s_lshr_b32 s81, {JD}, 1
s_mul_i32 s81, s81, 5120
s_add_u32 s80, s80, s81
s_add_u32 s80, s80, {hex(NF)}          ; frag 5p
s_and_b32 s81, {JD}, 1
s_mul_i32 s82, s81, 3072
s_add_u32 s82, s82, s80               ; A frag
s_lshl_b32 s81, s81, 3
s_add_u32 s81, s81, s80""")
            if k == 3: g(f"buffer_store_dwordx4 v[{N}:{N+3}], v2, {srd(S_WS)}, s82 offen")
            if k == 7: g(f"buffer_store_dwordx4 v[{N+4}:{N+7}], v2, {srd(S_WS)}, s82 offen offset:1024")
            if k == 9: g(f"buffer_store_dwordx2 v[{N+8}:{N+9}], v2, {srd(S_WS)}, s81 offen offset:2048")
        g(f"""s_lshl_b32 s80, {MQ}, 2
s_add_u32 s80, s80, {WV}
s_lshl_b32 s80, s80, 3
s_add_u32 s80, s80, {JD}
s_lshl_b32 s80, s80, 2
s_add_u32 s80, s80, {FLB}
s_add_u32 s80, s80, 1024
v_mov_b32 v90, {LAYER}
v_mov_b32 v91, 0
s_mov_b32 s82, 0xffff0000""")
        for k in range(10):
            g(f"v_lshlrev_b32 v{44+2*k}, 16, v{76+k}\nv_and_b32 v{45+2*k}, s82, v{76+k}")
            g(f"v_pk_mul_f32 v[{44+2*k}:{45+2*k}], v[{44+2*k}:{45+2*k}], s[84:85] op_sel_hi:[1,0]")
        self.publish('v90', 'v91', 's80')
        self.stamp_l(11)
        for k in range(10, 14):
            g(f"v_lshlrev_b32 v{44+2*k}, 16, v{76+k}\nv_and_b32 v{45+2*k}, s82, v{76+k}")
            g(f"v_pk_mul_f32 v[{44+2*k}:{45+2*k}], v[{44+2*k}:{45+2*k}], s[84:85] op_sel_hi:[1,0]")

    def stamp_l(self, idx):
        if not self.stamps: return
        self(f"s_waitcnt lgkmcnt(0)\ns_memtime s[98:99]\ns_lshl_b32 s96, {LAYER}, 4\ns_add_u32 s96, s96, {idx-16}\ns_mov_b32 m0, s96\ns_waitcnt lgkmcnt(0)\nv_writelane_b32 v{VSTAMP}, s98, m0")

    def gemm1(self):
        g = self
        A0, A1, AR, BR, DEPTH = 16, 44, 72, 100, 10
        areg = lambda t: f"v[{AR+4*t}:{AR+4*t+3}]"
        breg = lambda k, st: f"v[{BR+8*(k%DEPTH)+4*st}:{BR+8*(k%DEPTH)+4*st+3}]"
        acc = lambda st, t: f"v[{(A0,A1)[st]+4*t}:{(A0,A1)[st]+4*t+3}]"
        def rdA(k, t):
            base = ('v2', 'v3', 'v4')[k // 9]
            g(f"ds_read_b128 {areg(t)}, {base} offset:{(k%9)*7168 + 1024*t}")
        def ldB(k, st):
            idx = st*20 + k
            g(f"buffer_load_dwordx4 {breg(k,st)}, v2, {srd(S_WS)}, s{SNF+idx//4} offen offset:{1024*(idx%4)} sc1")
        g(f"""v_add_u32 v3, {9*7168}, v2
v_add_u32 v4, {18*7168}, v2
v_and_b32 v5, 15, v1
v_lshlrev_b32 v5, 2, v5
s_lshl_b32 s80, {MH}, 2
s_add_u32 s80, s80, {WV}
s_lshl_b32 s80, s80, 6
s_add_u32 s80, s80, {FLB}""")
        g(f"s_cmp_lg_u32 {LAYER}, 1\ns_cbranch_scc1 L_g1nb\ns_barrier\nL_g1nb:")
        for t in range(7): rdA(0, t)
        self.poll(f"buffer_load_dword v6, v5, {srd(S_WS)}, s80 offen offset:1024 sc1", f"v_cmp_gt_u32 vcc, {LAYER}, v6")
        self.acquire()
        self.stamp_l(12)
        for k in range(DEPTH):
            ldB(k, 0); ldB(k, 1)
        nld = 2 * DEPTH
        for k in range(20):
            g(f"s_waitcnt vmcnt({nld - 2*(k+1)})")
            for t in range(7):
                if t % 2 == 0 or t == 6:
                    tot = (7 - t) + (t if k < 19 else 0)
                    needn = 2 if t < 6 else 1
                    g(f"s_waitcnt lgkmcnt({tot - needn})")
                c0 = acc(1, t) if k == 0 else acc(0, t)
                g(f"v_mfma_f32_16x16x32_bf16 {acc(0,t)}, {areg(t)}, {breg(k,0)}, {c0}")
                g(f"v_mfma_f32_16x16x32_bf16 {acc(1,t)}, {areg(t)}, {breg(k,1)}, {acc(1,t)}")
                if k < 19: rdA(k+1, t)
            if k + DEPTH < 20:
                ldB(k+DEPTH, 0); ldB(k+DEPTH, 1); nld += 2
        self.stamp_l(13)
        g(f"""s_lshl_b32 s80, {J8}, 1
s_add_u32 s80, s80, {MH}
s_lshl_b32 s80, s80, 2
s_add_u32 s80, s80, {WV}
s_mul_i32 s80, s80, {2*57344}
s_lshr_b32 s81, {GG}, 1
s_mul_i32 s81, s81, 7168
s_add_u32 s80, s80, s81
s_add_u32 s80, s80, {hex(ACT)}
s_and_b32 s81, {GG}, 1
s_lshl_b32 s82, s81, 12
s_add_u32 s82, s82, s80
s_lshl_b32 s81, s81, 3
s_add_u32 s81, s81, s80
s_add_u32 s83, s82, 57344
s_add_u32 s84, s81, 57344""")
        OUT = 100
        P = lambda r: f"v[{r}:{r+1}]"
        pairs = [(st, t, h) for t in range(7) for st in range(2) for h in range(2)]
        order = []
        for z in range(3):
            for st in range(2):
                for t in (2*z, 2*z+1):
                    for h in range(2): order.append((st, t, h))
        for st in range(2):
            for h in range(2): order.append((st, 6, h))
        def outreg(st, t, h): return OUT + st*16 + 2*t + h
        def stage1(i):
            st, t, h = order[i]; x = (A0, A1)[st] + 4*t + 2*h; u = 140 + 4*(i % 3)
            g(f"v_exp_f32 v{u}, v{x}\nv_exp_f32 v{u+1}, v{x+1}")
        def stage2(i):
            u = 140 + 4*(i % 3)
            g(f"v_pk_add_f32 {P(u+2)}, {P(u)}, 2.0 op_sel_hi:[1,0]")
            g(f"v_pk_fma_f32 {P(u)}, {P(u)}, {P(u+2)}, 2.0 op_sel_hi:[1,1,0]")
            g(f"v_rcp_f32 v{u}, v{u}\nv_rcp_f32 v{u+1}, v{u+1}")
        def stage3(i):
            st, t, h = order[i]; x = (A0, A1)[st] + 4*t + 2*h; u = 140 + 4*(i % 3)
            g(f"v_pk_mul_f32 {P(u)}, {P(u)}, {P(x)}")
            g(f"v_pk_fma_f32 {P(u)}, {P(u)}, -2.0, {P(x)} op_sel_hi:[1,0,1]")
            g(f"v_cvt_pk_bf16_f32 v{outreg(st,t,h)}, v{u}, v{u+1}")
            if h == 1 and t < 6 and t % 2 == 1:
                r = outreg(st, t-1, 0)
                g(f"buffer_store_dwordx4 v[{r}:{r+3}], v2, {srd(S_WS)}, {('s82','s83')[st]} offen offset:{1024*(t//2)}")
            if h == 1 and t == 6:
                r = outreg(st, 6, 0)
                g(f"buffer_store_dwordx2 v[{r}:{r+1}], v2, {srd(S_WS)}, {('s81','s84')[st]} offen offset:3072")
        n = len(order)
        for i in range(n + 2):
            if i < n: stage1(i)
            if 0 <= i-1 < n: stage2(i-1)
            if 0 <= i-2 < n: stage3(i-2)
        g(f"""s_lshl_b32 s80, {MH}, 2
s_add_u32 s80, s80, {WV}
s_lshl_b32 s80, s80, 4
s_add_u32 s80, s80, {GG}
s_lshl_b32 s80, s80, 2
s_add_u32 s80, s80, {FLB}
s_add_u32 s80, s80, 1536
v_mov_b32 v90, {LAYER}
v_mov_b32 v91, 0""")
        self.stamp_l(14)
        self.publish('v90', 'v91', 's80')

    def gemm2(self):
        g = self
        AA, AB, TMP, RING = 16, 36, 56, 76
        accr = lambda rho, t: f"v[{(AA,AB)[rho&1]+4*t}:{(AA,AB)[rho&1]+4*t+3}]"
        ring = lambda rho, J: f"v[{RING+56*(rho&1)+4*J}:{RING+56*(rho&1)+4*J+3}]"
        g(f"""v_and_b32 v3, 7, v1
v_lshrrev_b32 v4, 2, v3
v_and_b32 v3, 3, v3
v_lshlrev_b32 v4, 6, v4
v_lshl_add_u32 v3, v3, 2, v4
s_lshl_b32 s80, {MQ}, 7
s_lshl_b32 s81, {WV}, 4
s_add_u32 s80, s80, s81
s_add_u32 s80, s80, {FLB}
s_lshl_b32 s82, {J8}, 2
s_add_u32 s82, s82, {MQ}
s_mul_i32 s82, s82, {4*57344}
s_mul_i32 s81, {WV}, 14336
s_add_u32 s82, s82, s81
s_add_u32 s82, s82, {hex(ACT)}""")
        for rho in range(4):
            g(f"""s_add_u32 s81, {WV}, {rho+1}
s_and_b32 s81, s81, 3
s_mul_i32 s83, s81, 57344
s_add_u32 s{84+rho}, s82, s83
s_mul_i32 s83, s81, 5120
s_add_u32 s83, s83, {SC}
v_add_u32 v{4+rho}, s83, v2""")
        g(f"s_mov_b32 s88, {f32(LN2)}")
        self.poll(f"buffer_load_dword v8, v3, {srd(S_WS)}, s80 offen offset:1536 sc1", f"v_cmp_gt_u32 vcc, {LAYER}, v8")
        self.acquire()
        self.stamp_l(15)
        def ld(rho, J):
            if J and J % 4 == 0: g(f"s_add_u32 s{84+rho}, s{84+rho}, 4096")
            g(f"buffer_load_dwordx4 {ring(rho,J)}, v2, {srd(S_WS)}, s{84+rho} offen offset:{1024*(J%4)} sc1")
        for rho in range(2):
            for J in range(14): ld(rho, J)
        nld = 28
        def wr(rho):
            for t in range(5): g(f"ds_write_b128 v{4+rho}, {accr(rho,t)} offset:{1024*t}")
        def rd():
            for t in range(5): g(f"ds_read_b128 v[{TMP+4*t}:{TMP+4*t+3}], v7 offset:{1024*t}")
        def addx(lo, hi, src):
            for r in range(lo, hi): g(f"v_fmac_f32 v{VX+r}, s88, v{src+r}")
        for rho in range(4):
            for J in range(14):
                g(f"s_waitcnt vmcnt({nld - (14*rho + J + 1)})")
                for t in range(5):
                    c = '0' if J == 0 else accr(rho, t)
                    g(f"v_mfma_f32_16x16x32_bf16 {accr(rho,t)}, {self.w2reg(5*J+t)}, {ring(rho,J)}, {c}")
                if rho < 2: ld(rho+2, J); nld += 1
                if rho == 1:
                    if J == 1: wr(0)
                    if J == 13: g("s_waitcnt lgkmcnt(0)\ns_barrier")
                if rho >= 2:
                    if J == 0: rd()
                    if J == 2: g("s_waitcnt lgkmcnt(0)\ns_barrier"); wr(rho-1)
                    if 3 <= J < 7: addx(5*(J-3), 5*(J-2), TMP)
                    if rho == 2 and J == 13: g("s_waitcnt lgkmcnt(0)\ns_barrier")
                    if rho == 3 and J == 8: g("s_waitcnt lgkmcnt(0)\ns_barrier"); rd()
                    if rho == 3 and J == 10: g("s_waitcnt lgkmcnt(0)")
                    if rho == 3 and J >= 10: addx(5*(J-10), 5*(J-9), TMP)
        addx(0, 20, AB)
        self.stamp_l(16)
        g(f"s_add_u32 {LAYER}, {LAYER}, 1\ns_cmp_eq_u32 {LAYER}, 2")
        if self.stop == 'l1': g("s_branch L_fin")
        g("s_cbranch_scc1 L_layer")

    def final(self):
        g = self
        g("L_fin:")
        for k in range(10): g(f"v_cvt_pk_bf16_f32 v{16+k}, v{VX+2*k}, v{VX+2*k+1}")
        g(f"""buffer_store_dwordx4 v[16:19], v14, {srd(S_OUT)}, 0 offen
buffer_store_dwordx4 v[20:23], v14, {srd(S_OUT)}, 0 offen offset:16
buffer_store_dwordx2 v[24:25], v14, {srd(S_OUT)}, 0 offen offset:32""")

    def build(self):
        g = self
        self.prologue()
        self.p0_waves012()
        self.p0_wave3()
        self.p1()
        if self.stop == 'p1': g("s_branch L_exit")
        self.p2_entry()
        self.lny()
        if self.stop == 'lny': g("s_branch L_fin")
        self.gemm1()
        if self.stop == 'g1': g("s_branch L_fin")
        self.gemm2()
        self.final()
        g("L_exit:")
        if self.stamps:
            self.stamp(40)
            g(f"""s_lshl_b32 s80, s2, 2
s_add_u32 s80, s80, {WV}
s_lshl_b32 s80, s80, 8
s_add_u32 s80, s80, {hex(STAMP)}
v_writelane_b32 v{VSTAMP}, {DEAD}, 62
v_writelane_b32 v{VSTAMP}, {SLOW}, 61
v_lshlrev_b32 v3, 2, v1
buffer_store_dword v{VSTAMP}, v3, {srd(S_WS)}, s80 offen""")
        g("L_end:\ns_endpgm")
        lines, added = hz.fix(self.a.lines)
        hdr = open('interleave_layers__ssm_conv_h3__dense_activation_mish__prompt.s.ref').read().split('\n')
        top = [l for l in hdr if l.startswith(';') and '@launch' not in l]
        txt = '\n'.join(top) + f"\n; @launch grid=(256,1,1) block=(256,1,1) lds={LDS_BYTES}\n"
        txt += f""".amdgcn_target "amdgcn-amd-amdhsa--gfx950"
.text
.globl {KNAME}
.p2align 8
.type {KNAME},@function
{KNAME}:
"""
        txt += '\n'.join(('    ' + l if l and not l.endswith(':') else l) for l in lines) + '\n'
        txt += f""".section .rodata,"a"
.p2align 6
.amdhsa_kernel {KNAME}
  .amdhsa_next_free_vgpr 512
  .amdhsa_next_free_sgpr 102
  .amdhsa_accum_offset 256
  .amdhsa_group_segment_fixed_size 0
  .amdhsa_kernarg_size 104
  .amdhsa_user_sgpr_count 2
  .amdhsa_user_sgpr_kernarg_segment_ptr 1
  .amdhsa_system_sgpr_workgroup_id_x 1
.end_amdhsa_kernel
"""
        return txt, added

if __name__ == '__main__':
    import argparse
    ap = argparse.ArgumentParser()
    ap.add_argument('-o', default='k.s'); ap.add_argument('--stop', default=None); ap.add_argument('--stamps', action='store_true')
    args = ap.parse_args()
    txt, added = Gen(args.stop, args.stamps).build()
    open(args.o, 'w').write(txt)
    print('wrote', args.o, 'lines', txt.count('\n'), 'hazard nops', added)
```
